```python
import torch

def _softmax(x, axis=-1):
    return torch.softmax(x, dim=axis)
def _gelu(x):
    return torch.nn.functional.gelu(x, approximate="tanh")
def _silu(x):
    return torch.nn.functional.silu(x)
def _sigmoid(x):
    return torch.sigmoid(x)
def _layernorm(x, axis=-1, eps=1e-5):
    m = x.mean(dim=axis, keepdim=True)
    v = x.var(dim=axis, keepdim=True, unbiased=False)
    return (x - m) / torch.sqrt(v + eps)
def _scatter_add(tgt, idx, src, axis=0):
    return tgt.clone().index_add_(axis, idx, src)
def _segment_sum(src, seg, n):
    out = torch.zeros((n,) + src.shape[1:], dtype=src.dtype)
    return out.index_add_(0, seg, src)
def _pad(x, pw):
    flat = tuple(v for pair in reversed(pw) for v in pair)
    return torch.nn.functional.pad(x, flat)

kernel_name = 'standalone__gqa_softmax__near_ridge'

def setup_inputs():

    _w = (lambda a: (lambda t: t.to(torch.bfloat16) if t.is_floating_point() else t)(torch.as_tensor(a)))
    B, Hq, Hkv, Sq, Sk, D = 8, 32, 16, 336, 1024, 128
    return {
        "q": _w((lambda *s: torch.randn(*s, dtype=torch.bfloat16) * 0.8)(B, Hq, Sq, D)),
        "k": _w((lambda *s: torch.randn(*s, dtype=torch.bfloat16) * 0.8)(B, Hkv, Sk, D)),
        "v": _w((lambda *s: torch.randn(*s, dtype=torch.bfloat16) * 0.05)(B, Hkv, Sk, D)),
    }

def reference(q, k, v):
    B, Hq, Sq, D = q.shape
    Hkv = k.shape[1]
    rep = Hq // Hkv
    k = (lambda x, n, axis: torch.repeat_interleave(x, n, dim=axis))(k, rep, axis=1)
    v = (lambda x, n, axis: torch.repeat_interleave(x, n, dim=axis))(v, rep, axis=1)
    scale = D ** -0.5
    scores = torch.einsum("bhqd,bhkd->bhqk", q, k) * scale
    p = _softmax(scores, axis=-1)
    return torch.einsum("bhqk,bhkd->bhqd", p, v)
```

```python
import re


def R(kind, lo, n=1):
    return [f"{kind}{i}" for i in range(lo, lo + n)]


def rr(kind, lo, n=1):
    return f"{kind}{lo}" if n == 1 else f"{kind}[{lo}:{lo + n - 1}]"


class Ins:
    __slots__ = ("text", "kind", "wr", "rd", "srcc", "ab", "ws", "waitfor", "cnt", "note")

    def __init__(self, text, kind, wr=(), rd=(), srcc=(), ab=(), ws=1, waitfor=None, cnt=None):
        self.text = text
        self.kind = kind
        self.wr = list(wr)
        self.rd = list(rd)
        self.srcc = list(srcc)
        self.ab = list(ab)
        self.ws = ws
        self.waitfor = waitfor
        self.cnt = cnt
        self.note = ""


def parse_regs(tok):
    tok = tok.strip()
    tok = tok.lstrip("-")
    m = re.fullmatch(r"abs\((.*)\)", tok)
    if m:
        tok = m.group(1)
    m = re.fullmatch(r"\|(.*)\|", tok)
    if m:
        tok = m.group(1)
    m = re.fullmatch(r"([vas])(\d+)", tok)
    if m:
        return [tok]
    m = re.fullmatch(r"([vas])\[(\d+):(\d+)\]", tok)
    if m:
        return [f"{m.group(1)}{i}" for i in range(int(m.group(2)), int(m.group(3)) + 1)]
    if tok in ("vcc", "exec", "m0", "scc"):
        return [tok]
    return []


TRANS = ("v_exp_f32", "v_rcp_f32", "v_log_f32", "v_rsq_f32", "v_sqrt_f32")


class Prog:
    def __init__(self):
        self.ins = []

    def add(self, i):
        self.ins.append(i)
        return i

    def valu(self, op, dst, *srcs, extra=""):
        kind = "trans" if op in TRANS else ("permlane" if op.startswith("v_permlane") else "valu")
        wr = parse_regs(dst)
        rd = []
        for s in srcs:
            rd += parse_regs(str(s))
        if op.startswith("v_permlane"):
            wr = wr + parse_regs(srcs[0])
            rd = rd + parse_regs(dst)
        if op in ("v_fmac_f32",):
            rd += wr
        text = f"{op} {dst}, " + ", ".join(str(s) for s in srcs) + extra
        return self.add(Ins(text, kind, wr, rd))

    def salu(self, op, dst, *srcs):
        wr = parse_regs(dst) if dst is not None else []
        rd = []
        for s in srcs:
            rd += parse_regs(str(s))
        args = ([dst] if dst is not None else []) + [str(s) for s in srcs]
        return self.add(Ins(f"{op} " + ", ".join(args), "salu", wr, rd))

    def mfma16(self, d, a, b, c):
        wr = parse_regs(d)
        ab = parse_regs(a) + parse_regs(b)
        srcc = parse_regs(str(c))
        return self.add(Ins(f"v_mfma_f32_16x16x32_bf16 {d}, {a}, {b}, {c}", "mfma", wr, ab + srcc, srcc, ab))

    def ds_read(self, op, dst, addr, off):
        assert 0 <= off < 65536, off
        return self.add(Ins(f"{op} {dst}, {addr} offset:{off}", "lds_rd", parse_regs(dst), parse_regs(addr)))

    def ds_write(self, op, addr, data, off):
        assert 0 <= off < 65536, off
        return self.add(Ins(f"{op} {addr}, {data} offset:{off}", "lds_wr", [], parse_regs(addr) + parse_regs(data)))

    def buf_load(self, op, dst, voff, srd, soff, off=0):
        assert 0 <= off < 4096
        return self.add(Ins(f"{op} {dst}, {voff}, {srd}, {soff} offen offset:{off}", "vm_ld", parse_regs(dst),
                            parse_regs(voff) + parse_regs(srd) + parse_regs(str(soff))))

    def buf_store(self, op, data, voff, srd, soff, off=0, flags=""):
        assert 0 <= off < 4096
        return self.add(Ins(f"{op} {data}, {voff}, {srd}, {soff} offen offset:{off}{flags}", "vm_st", [],
                            parse_regs(data) + parse_regs(voff) + parse_regs(srd) + parse_regs(str(soff))))

    def dma(self, voff, srd, soff, off=0, flags=""):
        assert 0 <= off < 4096
        return self.add(Ins(f"buffer_load_dwordx4 {voff}, {srd}, {soff} offen offset:{off} lds{flags}", "dma", [],
                            parse_regs(voff) + parse_regs(srd) + parse_regs(str(soff)) + ["m0"]))

    def wait(self, vm=None, lgkm=None):
        t = []
        if vm is not None:
            t.append(f"vmcnt({vm})")
        if lgkm is not None:
            t.append(f"lgkmcnt({lgkm})")
        return self.add(Ins("s_waitcnt " + " ".join(t), "wait", cnt=dict(vm=vm, lgkm=lgkm)))

    def wait_lgkm_for(self, regs):
        return self.add(Ins("s_waitcnt lgkmcnt(?)", "wait", waitfor=("lgkm", list(regs))))

    def wait_vm_for(self, regs):
        return self.add(Ins("s_waitcnt vmcnt(?)", "wait", waitfor=("vm", list(regs))))

    def nop(self, n=0):
        return self.add(Ins(f"s_nop {n}", "other", ws=n + 1))

    def raw(self, text, kind="other", wr=(), rd=()):
        return self.add(Ins(text, kind, wr, rd))

    def label(self, name):
        return self.add(Ins(f"{name}:", "label", ws=0))

    def comment(self, text):
        return self.add(Ins(f"; {text}", "label", ws=0))

    def text(self):
        out = []
        for i in self.ins:
            if i.kind == "label":
                out.append(i.text)
            else:
                out.append("    " + i.text)
        return "\n".join(out) + "\n"


def simulate(seq, resolve=True, verbose=False, strict=True):
    errors = []
    lg = []
    vm = []
    if resolve:
        best = {}
        lg, vm = [], []
        for i in seq:
            if i.kind == "wait":
                if i.waitfor is not None:
                    which, regs = i.waitfor
                    q = lg if which == "lgkm" else vm
                    last = -1
                    for idx, rs in enumerate(q):
                        if any(r in rs for r in regs):
                            last = idx
                    cap = 15 if which == "lgkm" else 63
                    n = len(q) - 1 - last if last >= 0 else cap
                    n = min(n, cap)
                    best[id(i)] = min(best.get(id(i), 99), n)
                    while len(q) > n:
                        q.pop(0)
                else:
                    if i.cnt.get("lgkm") is not None:
                        while len(lg) > i.cnt["lgkm"]:
                            lg.pop(0)
                    if i.cnt.get("vm") is not None:
                        while len(vm) > i.cnt["vm"]:
                            vm.pop(0)
            elif i.kind in ("lds_rd", "lds_wr"):
                lg.append(set(i.wr))
            elif i.kind in ("vm_ld", "vm_st", "dma"):
                vm.append(set(i.wr))
        for i in seq:
            if i.kind == "wait" and i.waitfor is not None:
                n = best[id(i)]
                which = i.waitfor[0]
                i.text = f"s_waitcnt {'lgkmcnt' if which == 'lgkm' else 'vmcnt'}({n})"
                i.cnt = {which: n}
    lg, vm = [], []
    pos = 0
    last_mfma_w = {}
    last_mfma_d = {}
    last_valu_w = {}
    last_trans_w = {}
    last_srcc_r = {}
    last_m0 = -99
    last_valu_sgpr = {}
    last_store_data = {}
    for n, i in enumerate(seq):
        if i.kind == "label":
            continue

        def err(msg):
            errors.append(f"[{n}] {i.text}: {msg}")
        touched = set(i.rd) | set(i.wr)
        for q, nm in ((lg, "lgkm"), (vm, "vm")):
            for rs in q:
                if rs & touched:
                    err(f"touches {sorted(rs & touched)} with outstanding {nm} load")
        if i.kind == "mfma":
            for r in i.ab:
                if r in last_mfma_w and pos - last_mfma_w[r] - 1 < 8:
                    err(f"mfma D->A/B {r} dist {pos - last_mfma_w[r] - 1}")
            for r in i.srcc:
                if r in last_mfma_w and tuple(i.srcc) != last_mfma_d[r] and pos - last_mfma_w[r] - 1 < 6:
                    err(f"mfma D->C overlap {r}")
            for r in i.rd:
                if r in last_valu_w and pos - last_valu_w[r] - 1 < 2:
                    err(f"valu->mfma {r} dist {pos - last_valu_w[r] - 1}")
            for r in i.wr:
                if r in last_mfma_w and r not in i.srcc and pos - last_mfma_w[r] - 1 < 6:
                    err(f"mfma WAW {r}")
        elif i.kind in ("valu", "trans", "permlane", "lds_rd", "lds_wr", "vm_ld", "vm_st", "dma"):
            for r in touched:
                if r in last_mfma_w and pos - last_mfma_w[r] - 1 < 8:
                    err(f"mfma D->{i.kind} {r} dist {pos - last_mfma_w[r] - 1}")
            if i.kind in ("valu", "permlane"):
                for r in i.rd:
                    if r in last_trans_w and pos - last_trans_w[r] - 1 < 1:
                        err(f"trans->valu {r}")
            if i.kind == "permlane":
                for r in i.rd:
                    if r in last_valu_w and pos - last_valu_w[r] - 1 < 2:
                        err(f"valu->permlane {r}")
            if i.kind in ("valu", "trans", "permlane"):
                for r in i.wr:
                    if r in last_srcc_r and pos - last_srcc_r[r] - 1 < 3:
                        err(f"srcc WAR {r}")
                    if r in last_store_data and pos - last_store_data[r] - 1 < 2:
                        err(f"store data WAR {r}")
                for r in i.rd:
                    if r in last_valu_sgpr and pos - last_valu_sgpr[r] - 1 < 2:
                        err(f"valu sgpr->valu {r}")
                if i.text.startswith(("v_readfirstlane", "v_readlane")):
                    for r in i.rd:
                        if r in last_valu_w and pos - last_valu_w[r] - 1 < 1:
                            err(f"valu->readlane {r}")
            if i.kind in ("vm_ld", "vm_st", "dma"):
                for r in i.rd:
                    if r in last_valu_sgpr and pos - last_valu_sgpr[r] - 1 < 5:
                        err(f"valu sgpr->vmem {r}")
            if i.kind == "dma" and pos - last_m0 - 1 < 1:
                err("m0->dma")
        if i.kind == "wait":
            c = i.cnt or {}
            if c.get("lgkm") is not None:
                while len(lg) > c["lgkm"]:
                    lg.pop(0)
            if c.get("vm") is not None:
                while len(vm) > c["vm"]:
                    vm.pop(0)
        elif i.kind in ("lds_rd", "lds_wr"):
            lg.append(set(i.wr))
        elif i.kind in ("vm_ld", "vm_st", "dma"):
            vm.append(set(i.wr))
        end = pos + i.ws - 1
        if i.kind == "mfma":
            for r in i.wr:
                last_mfma_w[r] = end
                last_mfma_d[r] = tuple(i.wr)
                last_valu_w.pop(r, None)
            for r in i.srcc:
                last_srcc_r[r] = end
        elif i.kind in ("valu", "trans", "permlane"):
            for r in i.wr:
                if r[0] in "va" and r not in ("vcc",):
                    last_valu_w[r] = end
                    last_mfma_w.pop(r, None)
                    if i.kind == "trans":
                        last_trans_w[r] = end
                    else:
                        last_trans_w.pop(r, None)
                else:
                    last_valu_sgpr[r] = end
        elif i.kind == "salu":
            if "m0" in i.wr:
                last_m0 = end
            for r in i.wr:
                last_valu_sgpr.pop(r, None)
        elif i.kind in ("lds_rd", "vm_ld"):
            for r in i.wr:
                last_mfma_w.pop(r, None)
                last_valu_w.pop(r, None)
                last_trans_w.pop(r, None)
        if i.kind == "vm_st" and "x4" in i.text:
            for r in parse_regs(i.text.split()[1].rstrip(",")):
                last_store_data[r] = end
        pos += i.ws
    return errors
```

```python
import sys
import struct
from asmlib import Prog, R, rr, simulate, Ins

SQ, SK, D = 336, 1024, 128
ROWS = 1056
KT = 16 * ROWS
TILE = 2 * KT
LDS_BYTES = 4 * TILE
CSCALE = 1.4426950408889634 * (128 ** -0.5)


def f32bits(x):
    return struct.unpack("<I", struct.pack("<f", x))[0]


vK = [0, 1, 2, 3]
vV = [4, 5, 6, 7]
vDMA = 8
vQO = 9
vOO = 10
vT = [11, 12, 13, 14, 15]
Q0 = 16
KB = [96, 128]
VB = [160, 192]
SB = [224, 232, 240]
vX = list(range(248, 256))
aO = lambda t, db: 32 * t + 4 * db
aL = lambda t: 192 + 4 * t
aONES = 216
aQE = 220
sQ, sK, sV, sO = 12, 16, 20, 24
sW, sWL, sT0, sT1, sIT, sHEAD = 28, 29, 30, 31, 32, 33
sC = 34
sTMP = [36, 37, 38, 39, 40, 41, 42, 43]
sWLc = 44
sQROW = 45


def qfrag(t, ds):
    if t == 5:
        return rr("a", aQE + 4 * ds, 4)
    return rr("v", Q0 + 16 * t + 4 * ds, 4)


def build(opts, leftover=None):
    P = Prog()
    leftover = list(leftover or [])
    P.salu("s_cmp_ge_u32", None, "s2", 256)
    P.raw("s_cbranch_scc1 L_end", "branch")
    P.raw("s_load_dwordx8 s[4:11], s[0:1], 0", "other", wr=R("s", 4, 8))
    P.salu("s_and_b32", f"s{sTMP[0]}", "s2", 7)
    P.salu("s_lshl_b32", f"s{sTMP[0]}", f"s{sTMP[0]}", 5)
    P.salu("s_lshr_b32", f"s{sTMP[1]}", "s2", 3)
    P.salu("s_add_u32", f"s{sHEAD}", f"s{sTMP[0]}", f"s{sTMP[1]}")
    P.valu("v_lshrrev_b32", f"v{vT[0]}", 6, "v0")
    P.valu("v_and_b32", f"v{vT[1]}", 63, "v0")
    P.valu("v_readfirstlane_b32", f"s{sW}", f"v{vT[0]}")
    P.valu("v_and_b32", f"v{vT[2]}", 15, f"v{vT[1]}")
    P.valu("v_lshrrev_b32", f"v{vT[3]}", 4, f"v{vT[1]}")
    P.salu("s_mul_i32", f"s{sTMP[2]}", f"s{sHEAD}", SQ * D * 2)
    P.salu("s_lshr_b32", f"s{sTMP[3]}", f"s{sHEAD}", 1)
    P.salu("s_lshl_b32", f"s{sTMP[3]}", f"s{sTMP[3]}", 18)
    P.salu("s_mul_i32", f"s{sWL}", f"s{sW}", 4 * ROWS)
    P.salu("s_mul_i32", f"s{sQROW}", f"s{sW}", 80 * 256)
    P.salu("s_mov_b32", f"s{sC}", hex(f32bits(CSCALE)))
    P.valu("v_lshlrev_b32", f"v{vDMA}", 12, f"v{vT[3]}")
    P.valu("v_lshl_add_u32", f"v{vDMA}", f"v{vT[2]}", 4, f"v{vDMA}")
    P.salu("s_lshl_b32", f"s{sTMP[4]}", f"s{sW}", 10)
    P.valu("v_add_u32", f"v{vDMA}", f"s{sTMP[4]}", f"v{vDMA}")
    P.valu("v_lshlrev_b32", f"v{vQO}", 8, f"v{vT[2]}")
    P.valu("v_lshl_add_u32", f"v{vQO}", f"v{vT[3]}", 4, f"v{vQO}")
    P.wait(lgkm=0)
    for srd, ptr, off, size in ((sQ, 4, sTMP[2], SQ * D * 2), (sK, 6, sTMP[3], SK * D * 2),
                                (sV, 8, sTMP[3], SK * D * 2), (sO, 10, sTMP[2], SQ * D * 2)):
        P.salu("s_add_u32", f"s{srd}", f"s{ptr}", f"s{off}")
        P.salu("s_addc_u32", f"s{srd + 1}", f"s{ptr + 1}", 0)
        P.salu("s_and_b32", f"s{srd + 1}", f"s{srd + 1}", "0xffff")
        P.salu("s_mov_b32", f"s{srd + 2}", size)
        P.salu("s_mov_b32", f"s{srd + 3}", "0x00020000")
    P.salu("s_mov_b32", f"s{sWLc}", f"s{sWL}")

    def dma_ops(slot, soffs, which):
        ops = []
        for isv in which:
            for T in (0, 1):
                for j in range(4):
                    m0c = T * 2 * TILE + slot * TILE + isv * KT + j * (ROWS - 256)
                    ops.append((m0c, sV if isv else sK, soffs[T], j * 256))
        return ops

    def emit_dma(op):
        m0c, srd, soff, imm = op
        P.salu("s_add_u32", "m0", f"s{sWLc}", m0c)
        P.nop(0)
        P.dma(f"v{vDMA}", rr("s", srd, 4), f"s{soff}", imm)

    P.salu("s_mov_b32", f"s{sT0}", 0)
    P.salu("s_mov_b32", f"s{sT1}", 16384)
    for op in dma_ops(0, (sT0, sT1), (0,)):
        emit_dma(op)
    for t in range(6):
        if t < 5:
            P.salu("s_add_u32", f"s{sTMP[5]}", f"s{sQROW}", t * 4096)
        else:
            P.salu("s_mov_b32", f"s{sTMP[5]}", 320 * 256)
        for ds in range(4):
            dst = rr("v", Q0 + 16 * t + 4 * ds, 4) if t < 5 else rr("v", KB[1] + 4 * ds, 4)
            P.buf_load("buffer_load_dwordx4", dst, f"v{vQO}", rr("s", sQ, 4), f"s{sTMP[5]}", ds * 64)
    for op in dma_ops(0, (sT0, sT1), (1,)):
        emit_dma(op)
    P.salu("s_mov_b32", f"s{sT0}", 32768)
    P.salu("s_mov_b32", f"s{sT1}", 32768 + 16384)
    g1ops = dma_ops(1, (sT0, sT1), (0, 1))
    g1ops = g1ops[:len(g1ops) - len(leftover)]
    for op in g1ops:
        emit_dma(op)
    P.salu("s_movk_i32", f"s{sTMP[6]}", ROWS)
    P.valu("v_mul_lo_u32", f"v{vT[0]}", f"v{vT[2]}", f"s{sTMP[6]}")
    P.valu("v_lshl_add_u32", f"v{vT[0]}", f"v{vT[3]}", 4, f"v{vT[0]}")
    P.valu("v_lshrrev_b32", f"v{vT[4]}", 2, f"v{vT[1]}")
    P.valu("v_mul_lo_u32", f"v{vT[4]}", f"v{vT[4]}", f"s{sTMP[6]}")
    P.valu("v_and_b32", f"v{vX[0]}", 3, f"v{vT[1]}")
    P.valu("v_lshl_add_u32", f"v{vT[4]}", f"v{vX[0]}", 3, f"v{vT[4]}")
    P.valu("v_add_u32", f"v{vT[4]}", KT, f"v{vT[4]}")
    P.valu("v_and_b32", f"v{vX[0]}", 1, f"v{vT[3]}")
    P.valu("v_lshrrev_b32", f"v{vX[1]}", 1, f"v{vT[3]}")
    P.valu("v_lshlrev_b32", f"v{vOO}", 8, f"v{vT[2]}")
    P.valu("v_lshl_add_u32", f"v{vOO}", f"v{vX[0]}", 5, f"v{vOO}")
    P.valu("v_lshl_add_u32", f"v{vOO}", f"v{vX[1]}", 4, f"v{vOO}")
    P.valu("v_lshlrev_b32", f"v{vX[7]}", 4, f"v{vT[1]}")
    for j in range(4):
        P.salu("s_add_u32", f"s{sTMP[0]}", f"s{sW}", j)
        P.salu("s_and_b32", f"s{sTMP[0]}", f"s{sTMP[0]}", 3)
        P.salu("s_lshr_b32", f"s{sTMP[1]}", f"s{sTMP[0]}", 1)
        P.salu("s_mul_i32", f"s{sTMP[1]}", f"s{sTMP[1]}", 2 * TILE)
        P.salu("s_and_b32", f"s{sTMP[0]}", f"s{sTMP[0]}", 1)
        P.salu("s_lshl_b32", f"s{sTMP[0]}", f"s{sTMP[0]}", 9)
        P.salu("s_add_u32", f"s{sTMP[0]}", f"s{sTMP[0]}", f"s{sTMP[1]}")
        P.valu("v_add_u32", f"v{vK[j]}", f"s{sTMP[0]}", f"v{vT[0]}")
        P.valu("v_add_u32", f"v{vV[j]}", f"s{sTMP[0]}", f"v{vT[4]}")
    for a in range(0, 216):
        P.valu("v_accvgpr_write_b32", f"a{a}", 0)
    P.valu("v_mov_b32", f"v{vT[0]}", "0x3f803f80")
    for a in range(4):
        P.valu("v_accvgpr_write_b32", f"a{aONES + a}", f"v{vT[0]}")
    for r in range(VB[1], VB[1] + 32):
        P.valu("v_mov_b32", f"v{r}", 0)
    for r in range(SB[1], SB[1] + 8):
        P.valu("v_mov_b32", f"v{r}", 0)
    for r in range(SB[2], SB[2] + 8):
        P.valu("v_mov_b32", f"v{r}", "0xf149f2ca")
    for t in range(6):
        base = Q0 + 16 * t if t < 5 else KB[1]
        for r in range(base, base + 16):
            if (r - base) % 4 == 0:
                P.wait_vm_for(R("v", r, 4))
            t0, t1 = vX[(2 * r) % 6], vX[(2 * r) % 6 + 1]
            P.valu("v_lshlrev_b32", f"v{t0}", 16, f"v{r}")
            P.valu("v_and_b32", f"v{t1}", "0xffff0000", f"v{r}")
            P.valu("v_mul_f32", f"v{t0}", f"s{sC}", f"v{t0}")
            P.valu("v_mul_f32", f"v{t1}", f"s{sC}", f"v{t1}")
            P.valu("v_cvt_pk_bf16_f32", f"v{r}", f"v{t0}", f"v{t1}")
            if t == 5:
                P.valu("v_accvgpr_write_b32", f"a{aQE + r - base}", f"v{r}")
    P.wait(vm=len(g1ops))
    P.raw("s_barrier", "other")

    def kread(j, slot, buf, f):
        kh, ds = f // 4, f % 4
        return lambda: P.ds_read("ds_read_b128", rr("v", KB[buf] + 4 * f, 4), f"v{vK[j]}",
                                 slot * TILE + kh * 256 + ds * 64)

    def vread(j, slot, buf, f):
        db, t = f // 2, f % 2
        return lambda: P.ds_read("ds_read_b64_tr_b16", rr("v", VB[buf] + 4 * db + 2 * t, 2), f"v{vV[j]}",
                                 slot * TILE + t * 256 + db * 32)

    NV_EARLY = 12
    for f in range(8):
        kread(0, 0, 0, f)()
    for f in range(NV_EARLY):
        vread(0, 0, 0, f)()
    P.salu("s_mov_b32", f"s{sIT}", 0)
    P.wait(lgkm=0)

    units = []
    for slot in (0, 1):
        for j in range(4):
            tiles = [0, 1, 2, 3, 4, 5] if j == 0 else [0, 1, 2, 3, 4]
            for k, t in enumerate(tiles):
                units.append((t, j, slot, slot * 4 + j, k))
    NU = len(units)

    def qk_mfmas(u):
        t, j, slot, bi, k = units[u % NU]
        sb = SB[u % 3]
        kb = KB[bi % 2]
        out = []
        for kh in range(2):
            for ds in range(4):
                d = rr("v", sb + 4 * kh, 4)
                out.append((d, rr("v", kb + 4 * (kh * 4 + ds), 4), qfrag(t, ds), 0 if ds == 0 else d))
        return out

    def pv_mfmas(u):
        t, j, slot, bi, k = units[u % NU]
        sb = SB[u % 3]
        vb = VB[bi % 2]
        out = []
        p = rr("v", sb, 4)
        for db in range(8):
            d = rr("a", aO(t, db), 4)
            out.append((d, rr("v", vb + 4 * db, 4), p, d))
        d = rr("a", aL(t), 4)
        out.append((d, rr("a", aONES, 4), p, d))
        return out

    def softmax_ops(u):
        sb = SB[u % 3]
        e = [lambda i=i: P.valu("v_exp_f32", f"v{sb + i}", f"v{sb + i}") for i in range(8)]
        c = [lambda i=i: P.valu("v_cvt_pk_bf16_f32", f"v{sb + i}", f"v{sb + 2 * i}", f"v{sb + 2 * i + 1}")
             for i in range(4)]
        return e, c

    GAPV = ["e0", "e1", "c0", "e2", "e3", "c1", None, "e4", "e5", "c2", None, "e6", "e7", "c3", None, None, None]
    FREE = [i for i, g in enumerate(GAPV) if g is None or g[0] == "c"]
    EXPG = [i for i, g in enumerate(GAPV) if g is not None and g[0] == "e"]

    mem_fill = {p: [] for p in range(NU + 2)}
    sal_fill = {p: [] for p in range(NU + 2)}
    pre_wait = {}
    block_first = {}
    for u, (t, j, slot, bi, k) in enumerate(units):
        if k == 0:
            block_first[bi] = u
    NB = 8
    for bi in range(NB):
        nb = (bi + 1) % NB
        nslot, nj = nb // 4, nb % 4
        first = block_first[bi]
        nper = 6 if bi % 4 == 0 else 5
        kr = [kread(nj, nslot, nb % 2, f) for f in range(8)]
        vr = [vread(nj, nslot, nb % 2, f) for f in range(16)]
        if nper == 5:
            plan = {2: (3, 4), 3: (3, 4), 4: (2, 4)}
        else:
            plan = {2: (2, 3), 3: (2, 3), 4: (2, 3), 5: (2, 3)}
        for per, (nk, nv) in plan.items():
            lst = []
            ks = [kr.pop(0) for _ in range(nk)]
            vs = [vr.pop(0) for _ in range(nv)]
            lst = ks + vs
            mem_fill[first + per] += lst
        assert len(vr) == 16 - NV_EARLY and not kr
        mem_fill[block_first[nb]] += vr
        pre_wait[(block_first[nb], 0)] = R("v", KB[nb % 2], 32)
        pre_wait[((block_first[nb] + 2) % NU, 8)] = R("v", VB[nb % 2], 32)
    barrier_after = {}
    dma_queue_at = {}
    for slot in (0, 1):
        bi = slot * 4 + 3
        pb = block_first[bi] + 1
        barrier_after[pb] = True
        dma_queue_at[pb + 1] = slot

    body_start = len(P.ins)
    P.label("L_loop")
    dq = list(leftover)
    emit_period_pend = [None]

    def emit_period(p, do_qk=True, do_pv=True, do_sm=True, in_loop=True):
        nonlocal dq
        mf = (qk_mfmas(p) if do_qk else []) + (pv_mfmas(p - 2) if do_pv else [])
        e, c = softmax_ops(p - 1)
        mems = list(mem_fill.get(p, [])) if in_loop else []
        if in_loop and p in dma_queue_at:
            slot = dma_queue_at[p]
            assert not dq
            dq = [("soff", slot)] + [("dma", op) for op in dma_ops(slot, (sT0, sT1), (0, 1))]
        gapbase = 0 if do_qk else 8
        pend_m0 = emit_period_pend[0]
        for mi, m in enumerate(mf):
            gi = gapbase + mi
            if in_loop and (p, gi) in pre_wait and gi == 0:
                P.wait_lgkm_for(pre_wait[(p, gi)])
            P.mfma16(*m)
            used_shadow = False
            if in_loop and (p, gi + 1) in pre_wait:
                P.wait_lgkm_for(pre_wait[(p, gi + 1)])
                used_shadow = True
            g = GAPV[gi] if do_sm else None
            isfree = g is None or g[0] == "c"
            if not used_shadow:
                if pend_m0 is not None and isfree and not mems:
                    m0c, srd, soff, imm = pend_m0
                    P.dma(f"v{vDMA}", rr("s", srd, 4), f"s{soff}", imm)
                    pend_m0 = None
                elif isfree and mems:
                    mems.pop(0)()
                elif dq and pend_m0 is None:
                    kind, val = dq.pop(0)
                    if kind == "soff":
                        P.salu("s_add_u32", f"s{sT0}", f"s{sT0}", 32768)
                        P.salu("s_add_u32", f"s{sT1}", f"s{sT1}", 32768)
                        if val == 0:
                            P.salu("s_cmp_lt_u32", None, f"s{sIT}", 3)
                            P.salu("s_cselect_b32", f"s{sK + 2}", SK * D * 2, 0)
                            P.salu("s_cselect_b32", f"s{sV + 2}", SK * D * 2, 0)
                            P.salu("s_cselect_b32", f"s{sWLc}", f"s{sWL}", "0x30000")
                    else:
                        P.salu("s_add_u32", "m0", f"s{sWLc}", val[0])
                        pend_m0 = val
            if g is not None:
                (e if g[0] == "e" else c)[int(g[1])]()
        assert not mems, (p, len(mems))
        emit_period_pend[0] = pend_m0
        if in_loop and p in barrier_after:
            assert not dq and pend_m0 is None, "dma not finished before barrier"
            P.wait(vm=0, lgkm=0)
            P.raw("s_barrier", "other")

    for p in range(NU):
        emit_period(p)
    if emit_period_pend[0] is not None:
        m0c, srd, soff, imm = emit_period_pend[0]
        P.dma(f"v{vDMA}", rr("s", srd, 4), f"s{soff}", imm)
        emit_period_pend[0] = None
    left = list(dq)
    P.salu("s_add_u32", f"s{sIT}", f"s{sIT}", 1)
    P.salu("s_cmp_lt_u32", None, f"s{sIT}", 4)
    P.raw("s_cbranch_scc1 L_loop", "branch")
    body_end = len(P.ins)

    P.wait(lgkm=0)
    e, c = softmax_ops(NU - 1)
    mf = pv_mfmas(NU - 2)
    sm = [[e[0]], [e[1]], [c[0], e[2]], [e[3]], [c[1], e[4]], [e[5]], [c[2], e[6]], [e[7]], [c[3]]]
    for mi, m in enumerate(mf):
        P.mfma16(*m)
        for f in sm[mi]:
            f()
    P.nop(1)
    for m in pv_mfmas(NU - 1):
        P.mfma16(*m)

    P.salu("s_mul_i32", f"s{sTMP[0]}", f"s{sW}", 8448)
    P.valu("v_add_u32", f"v{vT[0]}", f"s{sTMP[0]}", f"v{vX[7]}")
    P.valu("v_lshrrev_b32", f"v{vT[1]}", 2, f"v{vX[7]}")
    P.valu("v_add_u32", f"v{vT[2]}", f"s{sTMP[0]}", f"v{vT[1]}")
    for db in range(8):
        P.ds_write("ds_write_b128", f"v{vT[0]}", rr("a", aO(5, db), 4), db * 1024)
    P.ds_write("ds_write_b32", f"v{vT[2]}", f"a{aL(5)}", 8192)

    TMPB = 96

    def store_pairs(src_regs_fn, rinv, soff, dbpairs, tb):
        for n, dp in enumerate(dbpairs):
            base = tb + 16 * (n % 4)
            f = base
            o = base + 8
            for h in range(2):
                src_regs_fn(2 * dp + h, f + 4 * h)
            for i in range(8):
                P.valu("v_mul_f32", f"v{f + i}", f"v{f + i}", rinv)
            for i in range(4):
                P.valu("v_cvt_pk_bf16_f32", f"v{o + i}", f"v{f + 2 * i}", f"v{f + 2 * i + 1}")
            P.nop(1)
            P.valu("v_permlane16_swap_b32", f"v{o}", f"v{o + 2}")
            P.valu("v_permlane16_swap_b32", f"v{o + 1}", f"v{o + 3}")
            yield (o, dp)

    for t in range(5):
        P.valu("v_accvgpr_read_b32", f"v{vT[3]}", f"a{aL(t)}")
        P.salu("s_add_u32", f"s{sTMP[5]}", f"s{sQROW}", t * 4096)
        P.valu("v_rcp_f32", f"v{vT[4]}", f"v{vT[3]}")

        def src(db, dstb, t=t):
            for i in range(4):
                P.valu("v_accvgpr_read_b32", f"v{dstb + i}", f"a{aO(t, db) + i}")
        for o, dp in store_pairs(src, f"v{vT[4]}", None, range(4), TMPB + 64 * (t % 2)):
            P.buf_store("buffer_store_dwordx4", rr("v", o, 4), f"v{vOO}", rr("s", sO, 4), f"s{sTMP[5]}", dp * 64)
    P.wait(lgkm=0)
    P.raw("s_barrier", "other")
    P.salu("s_lshl_b32", f"s{sTMP[0]}", f"s{sW}", 11)
    P.valu("v_add_u32", f"v{vT[0]}", f"s{sTMP[0]}", f"v{vX[7]}")
    EB = 16
    for wp in range(4):
        for h in range(2):
            P.ds_read("ds_read_b128", rr("v", EB + 8 * wp + 4 * h, 4), f"v{vT[0]}", wp * 8448 + h * 1024)
        P.ds_read("ds_read_b32", f"v{EB + 32 + wp}", f"v{vT[1]}", wp * 8448 + 8192)
    P.wait(lgkm=0)
    for i in range(8):
        P.valu("v_add_f32", f"v{EB + i}", f"v{EB + i}", f"v{EB + 8 + i}")
        P.valu("v_add_f32", f"v{EB + 16 + i}", f"v{EB + 16 + i}", f"v{EB + 24 + i}")
    P.valu("v_add_f32", f"v{EB + 32}", f"v{EB + 32}", f"v{EB + 33}")
    P.valu("v_add_f32", f"v{EB + 34}", f"v{EB + 34}", f"v{EB + 35}")
    for i in range(8):
        P.valu("v_add_f32", f"v{EB + i}", f"v{EB + i}", f"v{EB + 16 + i}")
    P.valu("v_add_f32", f"v{EB + 32}", f"v{EB + 32}", f"v{EB + 34}")
    P.valu("v_rcp_f32", f"v{vT[4]}", f"v{EB + 32}")
    P.salu("s_lshl_b32", f"s{sTMP[5]}", f"s{sW}", 6)
    P.salu("s_add_u32", f"s{sTMP[5]}", f"s{sTMP[5]}", 320 * 256)
    for i in range(8):
        P.valu("v_mul_f32", f"v{EB + i}", f"v{EB + i}", f"v{vT[4]}")
    o = EB + 40
    for i in range(4):
        P.valu("v_cvt_pk_bf16_f32", f"v{o + i}", f"v{EB + 2 * i}", f"v{EB + 2 * i + 1}")
    P.nop(1)
    P.valu("v_permlane16_swap_b32", f"v{o}", f"v{o + 2}")
    P.valu("v_permlane16_swap_b32", f"v{o + 1}", f"v{o + 3}")
    P.buf_store("buffer_store_dwordx4", rr("v", o, 4), f"v{vOO}", rr("s", sO, 4), f"s{sTMP[5]}", 0)
    P.label("L_end")
    P.raw("s_endpgm", "other")

    pro = P.ins[:body_start]
    body = P.ins[body_start:body_end]
    epi = P.ins[body_end:]
    seq = pro + body + body + body + epi
    errs = simulate(seq)
    return P, errs, left


HEADER = """; Kernarg layout for this problem (48 bytes, ptrs only, base s[0:1]):
; @launch grid=(256,1,1) block=(256,1,1) lds={lds}
.amdgcn_target "amdgcn-amd-amdhsa--gfx950"
.text
.globl standalone__gqa_softmax__near_ridge_kernel
.p2align 8
.type standalone__gqa_softmax__near_ridge_kernel,@function
standalone__gqa_softmax__near_ridge_kernel:
"""
FOOTER = """.section .rodata,"a"
.p2align 6
.amdhsa_kernel standalone__gqa_softmax__near_ridge_kernel
  .amdhsa_next_free_vgpr 512
  .amdhsa_next_free_sgpr 96
  .amdhsa_accum_offset 256
  .amdhsa_group_segment_fixed_size 0
  .amdhsa_kernarg_size 48
  .amdhsa_user_sgpr_count 2
  .amdhsa_user_sgpr_kernarg_segment_ptr 1
  .amdhsa_system_sgpr_workgroup_id_x 1
.end_amdhsa_kernel
"""

if __name__ == "__main__":
    out = sys.argv[1] if len(sys.argv) > 1 else "k1.s"
    _, _, left = build({})
    P, errs, left2 = build({}, left)
    assert left == left2, (left, left2)
    print('leftover dmas', len(left))
    for e in errs[:40]:
        print("HAZARD", e)
    print("instructions:", sum(1 for i in P.ins if i.kind != "label"), "errors:", len(errs))
    open(out, "w").write(HEADER.format(lds=LDS_BYTES) + P.text() + FOOTER)
```

```python
import sys
HDR = """; @launch grid=({grid},1,1) block=({block},1,1) lds={lds}
.amdgcn_target "amdgcn-amd-amdhsa--gfx950"
.text
.globl standalone__gqa_softmax__near_ridge_kernel
.p2align 8
.type standalone__gqa_softmax__near_ridge_kernel,@function
standalone__gqa_softmax__near_ridge_kernel:
    s_load_dwordx4 s[4:7], s[0:1], 8       ; k, v
    s_load_dwordx2 s[8:9], s[0:1], 32      ; debug
    s_waitcnt lgkmcnt(0)
    s_mov_b32 s12, s4
    s_mov_b32 s13, s5
    s_mov_b32 s14, 0x2000000
    s_mov_b32 s15, 0x00020000
    s_mov_b32 s16, s8
    s_mov_b32 s17, s9
    s_mov_b32 s18, 256
    s_mov_b32 s19, 0x00020000
    v_lshrrev_b32 v1, 6, v0
    s_nop 1
    v_readfirstlane_b32 s20, v1
    v_and_b32 v2, 63, v0                   ; lane
    v_lshlrev_b32 v3, 4, v2
    s_lshl_b32 s21, s2, 16
    s_and_b32 s21, s21, 0x1ffffff
    s_lshl_b32 s22, s20, 14
    s_add_u32 s21, s21, s22
    s_lshl_b32 s23, s20, 14
    v_add_u32 v4, s23, v3
"""
FTR = """
    s_cmp_lg_u32 s2, 0
    s_cbranch_scc1 L_end
    s_sub_u32 s26, s26, s24
    v_mov_b32 v5, s26
    s_lshl_b32 s27, s20, 2
    v_mov_b32 v6, s27
    buffer_store_dword v5, v6, s[16:19], 0 offen
    s_waitcnt vmcnt(0)
L_end:
s_endpgm
.section .rodata,"a"
.p2align 6
.amdhsa_kernel standalone__gqa_softmax__near_ridge_kernel
  .amdhsa_next_free_vgpr {nfv}
  .amdhsa_next_free_sgpr 102
  .amdhsa_accum_offset {acc}
  .amdhsa_group_segment_fixed_size 0
  .amdhsa_kernarg_size 48
  .amdhsa_user_sgpr_count 2
  .amdhsa_user_sgpr_kernarg_segment_ptr 1
  .amdhsa_system_sgpr_workgroup_id_x 1
.end_amdhsa_kernel
"""
def gen(name, body, iters=200, grid=256, block=256, lds=65536, nfv=512, acc=256, init=()):
    s = HDR.format(grid=grid, block=block, lds=lds)
    for r in range(8, min(acc, 256)):
        s += f"    v_mov_b32 v{r}, 0x3c003c00\n"
    if nfv > acc:
        for r in range(0, nfv - acc):
            s += f"    v_accvgpr_write_b32 a{r}, 0\n"
    for l in init: s += "    " + l + "\n"
    s += f"    s_mov_b32 s28, {iters}\n"
    s += "    s_barrier\n    s_memtime s[24:25]\n    s_waitcnt lgkmcnt(0)\n"
    s += ".p2align 6\nL_loop:\n"
    for l in body: s += "    " + l + "\n"
    s += "    s_sub_u32 s28, s28, 1\n    s_cmp_lg_u32 s28, 0\n    s_cbranch_scc1 L_loop\n"
    s += "    s_waitcnt vmcnt(0) lgkmcnt(0)\n    s_nop 15\n    s_nop 15\n    s_memtime s[26:27]\n    s_waitcnt lgkmcnt(0)\n"
    s += FTR.format(nfv=nfv, acc=acc)
    open(f"mb_{name}.s", "w").write(s)

def mfma(i, acc=True):
    a = (i % 16) * 16
    return f"v_mfma_f32_32x32x16_bf16 a[{a}:{a+15}], v[{8+4*(i%8)}:{11+4*(i%8)}], v[{40+4*(i%8)}:{43+4*(i%8)}], a[{a}:{a+15}]"

N = 32
gen("a", [mfma(i) for i in range(N)])
def fill_b(i):
    r = 80 + (i % 32)
    l = [f"v_exp_f32 v{r}, v{r}", f"v_add_f32 v{120+(i%2)}, v{120+(i%2)}, v{80+((i+16)%32)}"]
    if i % 2: l.append(f"v_cvt_pk_bf16_f32 v{130+(i%8)}, v{80+((i+8)%32)}, v{80+((i+9)%32)}")
    return l
body = []
for i in range(N): body += [mfma(i)] + fill_b(i)
gen("b", body)
body = []
for i in range(N):
    body += [mfma(i)] + fill_b(i)
    if i % 3 == 0: body.append(f"ds_read_b128 v[{140+4*(i%8)}:{143+4*(i%8)}], v4 offset:{1024*(i%8)}")
    elif i % 3 == 1: body.append(f"ds_read_b64_tr_b16 v[{180+2*(i%8)}:{181+2*(i%8)}], v4 offset:{1024*(i%8)}")
    else: body.append("s_waitcnt lgkmcnt(4)")
gen("c", body)
body = []
for i in range(N):
    body += [mfma(i)] + fill_b(i) + [f"v_fma_f32 v{200+(i%16)}, v{200+(i%16)}, v7, v6"]
    if i % 3 == 0: body.append(f"ds_read_b128 v[{140+4*(i%8)}:{143+4*(i%8)}], v4 offset:{1024*(i%8)}")
    elif i % 3 == 1: body.append(f"ds_read_b64_tr_b16 v[{180+2*(i%8)}:{181+2*(i%8)}], v4 offset:{1024*(i%8)}")
    else: body.append("s_waitcnt lgkmcnt(4)")
gen("d", body)
body = []
for i in range(N):
    body += [mfma(i)]
    if i % 8 == 0:
        body += [f"s_add_u32 m0, s23, {1024*(i//8)}", "s_nop 0", f"buffer_load_dwordx4 v3, s[12:15], s21 offen lds"]
body.append("s_waitcnt vmcnt(8)")
gen("e", body)
body = []
for i in range(N):
    body += [mfma(i)] + fill_b(i)
    if i % 3 == 0: body.append(f"ds_read_b128 v[{140+4*(i%8)}:{143+4*(i%8)}], v4 offset:{1024*(i%8)}")
    elif i % 3 == 1: body.append(f"ds_read_b64_tr_b16 v[{180+2*(i%8)}:{181+2*(i%8)}], v4 offset:{1024*(i%8)}")
    else: body.append("s_waitcnt lgkmcnt(4)")
    if i % 8 == 2:
        body += [f"s_add_u32 m0, s23, {8192+1024*(i//8)}"]
    if i % 8 == 3:
        body += [f"buffer_load_dwordx4 v3, s[12:15], s21 offen lds"]
body.append("s_waitcnt vmcnt(8)")
gen("f", body)
gen("g", [f"v_fma_f32 v{80+i}, v{80+i}, v7, v6" for i in range(32)])
gen("h", [f"v_fma_f32 v{80+i}, v{80+i}, v7, v6" for i in range(32)], block=512, nfv=256, acc=256, lds=131072)
gen("i", [f"v_exp_f32 v{80+i}, v{80+i}" for i in range(32)])
gen("j", [f"v_exp_f32 v{80+i}, v{80+i}" for i in range(32)], block=512, nfv=256, acc=256, lds=131072)
```

```python
import mb
from mb import HDR, FTR
def gen(name, body, iters=20, grid=256, block=256, lds=65536, nfv=512, acc=256):
    s = HDR.format(grid=grid, block=block, lds=lds)
    for r in range(8, 72, 4):
        s += f"    buffer_load_dwordx4 v[{r}:{r+3}], v3, s[12:15], s21 offen offset:{(r-8)*64}\n"
    s += "    s_waitcnt vmcnt(0)\n"
    for r in range(0, 192): s += f"    v_accvgpr_write_b32 a{r}, 0\n"
    for r in range(0, 64): s += f"    v_accvgpr_write_b32 a{192+r}, v{8+r}\n"
    for r in range(96, 256): s += f"    v_mov_b32 v{r}, 0\n"
    s += f"    s_mov_b32 s28, {iters}\n    s_lshl_b32 s27, s20, 3\n    s_barrier\n"
    s += "    s_memtime s[24:25]\n    s_memrealtime s[32:33]\n    s_waitcnt lgkmcnt(0)\n.p2align 6\nL_loop:\n"
    for l in body: s += "    " + l + "\n"
    s += "    s_sub_u32 s28, s28, 1\n    s_cmp_lg_u32 s28, 0\n    s_cbranch_scc1 L_loop\n"
    s += "    s_memtime s[30:31]\n    s_memrealtime s[34:35]\n    s_waitcnt lgkmcnt(0)\n"
    s += "    s_sub_u32 s26, s30, s24\n    s_sub_u32 s36, s34, s32\n"
    s += "    s_cmp_lg_u32 s2, 5\n    s_cbranch_scc1 L_end\n"
    s += "    v_mov_b32 v80, s26\n    v_mov_b32 v81, s36\n    v_mov_b32 v6, s27\n"
    s += "    buffer_store_dwordx2 v[80:81], v6, s[16:19], 0 offen\n    s_waitcnt vmcnt(0)\n"
    s += "L_end:\ns_endpgm\n" + FTR.split("s_endpgm\n")[1].format(nfv=nfv, acc=acc)
    open(f"mb_{name}.s", "w").write(s)
def m(acc, a, b, ca="a", cb=0, ra="v", rb="v"):
    A = f"v[{8+4*a}:{11+4*a}]" if ra == "v" else f"a[{192+4*a}:{195+4*a}]"
    B = f"v[{40+4*b}:{43+4*b}]" if rb == "v" else f"a[{224+4*b}:{227+4*b}]"
    return f"v_mfma_f32_16x16x32_bf16 {ca}[{cb+acc*4}:{cb+acc*4+3}], {A}, {B}, {ca}[{cb+acc*4}:{cb+acc*4+3}]"
N = 128
gen("w1", [m(i % 32, i % 8, (i // 8) % 8) for i in range(N)])
gen("w2", [m(i % 32, i % 8, (i // 8) % 8, "v", 96) for i in range(N)])
gen("w3", [m(i % 32, i % 8, (i // 8) % 8, ra="a") for i in range(N)])
gen("w4", [m(i % 32, i % 8, (i // 8) % 8, ra="a", rb="a") for i in range(N)])
gen("w5", [m((i // 2) % 32, i % 8, ((i // 16) * 2 + i % 2) % 8) for i in range(N)])
gen("w6", [m(i % 32, (i // 8) % 8, i % 8) for i in range(N)])
gen("w7", [m((i // 4) % 32, i % 8, (i * 3) % 8, "v", 96) for i in range(N)])
gen("w8", [m((i // 8) % 32, i % 8, (i * 3) % 8, "v", 96) for i in range(N)])
gen("w9", [m(((i // 8) * 2 + i % 2) % 32, i % 8, ((i // 2) * 3) % 8, "v", 96) for i in range(N)])
gen("w10", [m(i % 32, (i // 2) % 8, ((i // 16) * 2 + i % 2) % 8) for i in range(N)])
gen("w11", [m(i % 32, (i // 4) % 8, ((i // 32) * 4 + i % 4) % 8) for i in range(N)])
def mix(pvf):
    b = []
    for u in range(8):
        b += [m((u % 3) * 2 + i // 4, i % 8, (u + i) % 8, "v", 96) for i in range(8)]
        b += pvf(u)
    return b
gen("w12", mix(lambda u: [m((u % 4) * 8 + i, i, u % 8) for i in range(8)]))
b = []
for u in range(8):
    qk = [m((u % 3) * 2 + i // 4, i % 8, (u + i) % 8, "v", 96) for i in range(8)]
    pv = [m((u % 4) * 8 + i, i, u % 8) for i in range(8)]
    for x, y in zip(qk, pv): b += [x, y]
gen("w13", b)
```
